```python
import torch

def _softmax(x, axis=-1):
    return torch.softmax(x, dim=axis)

def _gelu(x):
    return torch.nn.functional.gelu(x, approximate='tanh')

def _silu(x):
    return torch.nn.functional.silu(x)

def _sigmoid(x):
    return torch.sigmoid(x)

def _layernorm(x, axis=-1, eps=1e-05):
    m = x.mean(dim=axis, keepdim=True)
    v = x.var(dim=axis, keepdim=True, unbiased=False)
    return (x - m) / torch.sqrt(v + eps)

def _scatter_add(tgt, idx, src, axis=0):
    return tgt.clone().index_add_(axis, idx, src)

def _segment_sum(src, seg, n):
    out = torch.zeros((n,) + src.shape[1:], dtype=src.dtype)
    return out.index_add_(0, seg, src)

def _pad(x, pw):
    flat = tuple((v for pair in reversed(pw) for v in pair))
    return torch.nn.functional.pad(x, flat)
kernel_name = 'standalone__conformer_family_branchformer__speech'

def setup_inputs():

    _w = lambda a: (lambda t: t.to(torch.bfloat16) if t.is_floating_point() else t)(torch.as_tensor(a))
    B, T, D, K = (2, 4000, 144, 15)
    s = float(D) ** (-0.5)
    return {'x': _w((lambda *s: torch.randn(*s, dtype=torch.bfloat16) * 0.05)(B, T, D)), 'w_q': _w((lambda *s: torch.randn(*s, dtype=torch.bfloat16) * 1.6)(D, D) * s), 'w_k': _w((lambda *s: torch.randn(*s, dtype=torch.bfloat16) * 1.6)(D, D) * s), 'w_v': _w((lambda *s: torch.randn(*s, dtype=torch.bfloat16) * 0.4)(D, D) * s), 'w_ao': _w((lambda *s: torch.randn(*s, dtype=torch.bfloat16) * 0.4)(D, D) * s), 'w_up': _w((lambda *s: torch.randn(*s, dtype=torch.bfloat16) * 0.8)(D, 2 * D) * s), 'dw': _w((lambda *s: torch.randn(*s, dtype=torch.bfloat16) * 0.8)(K, D) * (1.0 / K)), 'w_dn': _w((lambda *s: torch.randn(*s, dtype=torch.bfloat16) * 0.4)(D, D) * s), 'w_merge': _w((lambda *s: torch.randn(*s, dtype=torch.bfloat16) * 0.4)(2 * D, D) * s)}

def reference(x, w_q, w_k, w_v, w_ao, w_up, dw, w_dn, w_merge):
    B, T, D = x.shape
    K = dw.shape[0]
    xa = _layernorm(x, axis=-1)
    q = torch.einsum('btd,de->bte', xa, w_q)
    k = torch.einsum('btd,de->bte', xa, w_k)
    v = torch.einsum('btd,de->bte', xa, w_v)
    logits = torch.einsum('btd,bsd->bts', q, k) * float(D) ** (-0.5)
    attn = _softmax(logits, axis=-1)
    ya = torch.einsum('bts,bsd->btd', attn, v)
    ya = torch.einsum('btd,de->bte', ya, w_ao)
    xc = _layernorm(x, axis=-1)
    h = _gelu(torch.einsum('btd,de->bte', xc, w_up))
    u = h[..., :D].clone()
    g = _layernorm(h[..., D:], axis=-1)
    pad = K // 2
    gp = _pad(g, ((0, 0), (pad, pad), (0, 0)))
    conv = torch.zeros_like(g)
    for i in range(K):
        conv = conv + gp[:, i:i + T, :] * dw[i][None, None, :]
    yc = torch.einsum('btd,de->bte', u * conv, w_dn)
    merged = torch.concatenate([ya, yc], axis=-1)
    out = torch.einsum('btf,fd->btd', merged, w_merge)
    return x + out
```

```python
import re

def v(i, n=1):
    return f"v{i}" if n == 1 else f"v[{i}:{i+n-1}]"
def a(i, n=1):
    return f"a{i}" if n == 1 else f"a[{i}:{i+n-1}]"
def s(i, n=1):
    return f"s{i}" if n == 1 else f"s[{i}:{i+n-1}]"

_REG = re.compile(r'^-?\|?(?:abs\()?([vas])(?:(\d+)|\[(\d+):(\d+)\])\)?\|?$')

def regs_of(op):
    op = op.strip()
    if op in ('vcc',): return {('s', 'vcc_lo'), ('s', 'vcc_hi')}
    if op in ('vcc_lo', 'vcc_hi'): return {('s', op)}
    if op == 'exec': return {('s', 'exec_lo'), ('s', 'exec_hi')}
    if op in ('exec_lo', 'exec_hi'): return {('s', op)}
    if op == 'm0': return {('s', 'm0')}
    m = _REG.match(op)
    if not m: return set()
    k = m.group(1)
    if m.group(2) is not None: return {(k, int(m.group(2)))}
    return {(k, i) for i in range(int(m.group(3)), int(m.group(4)) + 1)}

TRANS = ('v_exp_f32', 'v_log_f32', 'v_rcp_f32', 'v_rsq_f32', 'v_sqrt_f32', 'v_sin_f32', 'v_cos_f32')

class Ins:
    __slots__ = ('text', 'op', 'ops', 'defs', 'uses', 'kind', 'passes', 'srcc', 'ab', 'islabel', 'states', 'mods')
    def __init__(self, text):
        self.text = text
        t = text.split(';')[0].strip()
        self.islabel = t.endswith(':') or t.startswith('.') or t == ''
        self.defs = set(); self.uses = set(); self.kind = 'other'; self.passes = 0; self.srcc = set(); self.ab = set()
        self.states = 0 if self.islabel else 1
        self.op = ''; self.ops = []; self.mods = ''
        if self.islabel: return
        parts = t.split(None, 1)
        self.op = op = parts[0]
        rest = parts[1] if len(parts) > 1 else ''
        ops = []; depth = 0; cur = ''
        for ch in rest:
            if ch == '[': depth += 1
            if ch == ']': depth -= 1
            if ch == ',' and depth == 0:
                ops.append(cur.strip()); cur = ''
            else: cur += ch
        if cur.strip(): ops.append(cur.strip())
        if ops:
            last = ops[-1].split(None, 1)
            if len(last) > 1:
                ops[-1] = last[0]; self.mods = last[1]
        self.ops = ops
        R = [regs_of(o) for o in ops]
        allr = lambda xs: set().union(*xs) if xs else set()
        if op == 's_nop':
            self.kind = 'nop'; self.states = int(ops[0], 0) + 1
        elif op.startswith('v_mfma'):
            self.kind = 'mfma'
            self.passes = 8 if '32x32' in op else 4
            self.defs = R[0]; self.ab = R[1] | R[2]; self.srcc = R[3]; self.uses = self.ab | self.srcc
        elif op.startswith('v_cmp'):
            self.kind = 'valu'; self.defs = R[0]; self.uses = allr(R[1:])
        elif op.startswith('v_readfirstlane') or op.startswith('v_readlane'):
            self.kind = 'valu'; self.defs = R[0]; self.uses = allr(R[1:])
        elif op.startswith('v_permlane') and 'swap' in op:
            self.kind = 'valu'; self.defs = R[0] | R[1]; self.uses = R[0] | R[1]
        elif op.startswith('v_'):
            self.kind = 'valu'
            self.defs = set(R[0]); self.uses = allr(R[1:])
            if op.startswith(('v_add_co', 'v_sub_co', 'v_addc_co', 'v_subb_co', 'v_subrev_co')):
                self.defs |= R[1]; self.uses = allr(R[2:])
            if op.startswith(('v_fmac', 'v_mac', 'v_pk_fmac', 'v_dot2c', 'v_writelane')):
                self.uses |= R[0]
            if op.startswith('v_cndmask') and len(ops) == 3:
                self.uses |= regs_of('vcc')
            if 'dpp' in op or 'row_' in self.mods or 'quad_perm' in self.mods:
                self.kind = 'valu'
        elif op.startswith('ds_'):
            self.kind = 'ds'
            if op.startswith(('ds_read', 'ds_bpermute', 'ds_permute', 'ds_swizzle')):
                self.defs = R[0]; self.uses = allr(R[1:])
            else:
                self.uses = allr(R)
        elif op.startswith('buffer_') or op.startswith('global_'):
            self.kind = 'vmem'
            lds = ' lds' in (' ' + self.mods) or 'load_lds' in op
            if lds:
                self.uses = allr(R) | {('s', 'm0')}; self.kind = 'vmem_lds'
            elif 'load' in op:
                self.defs = R[0]; self.uses = allr(R[1:])
            elif 'atomic' in op and 'sc0' in self.mods:
                self.defs = R[0]; self.uses = allr(R)
            else:
                self.uses = allr(R)
        elif op.startswith('s_'):
            self.kind = 'salu'
            if op.startswith(('s_cmp', 's_waitcnt', 's_branch', 's_cbranch', 's_barrier', 's_endpgm', 's_sleep', 's_setprio', 's_bitcmp')):
                self.uses = allr(R)
            else:
                self.defs = R[0] if R else set(); self.uses = allr(R[1:])
                if 'saveexec' in op: self.defs = self.defs | regs_of('exec')

    def is_trans(self): return self.op.replace('_e32', '').replace('_e64', '') in TRANS
    def is_dpp(self): return 'dpp' in self.op or 'row_' in self.mods or 'quad_perm' in self.mods
    def wide_store(self): return self.kind == 'vmem' and 'store' in self.op and ('x4' in self.op or 'x3' in self.op)

def required(p, c):
    need = 0
    pv = {r for r in p.defs if r[0] in 'va'}
    ps = {r for r in p.defs if r[0] == 's'}
    cv_use = {r for r in c.uses if r[0] in 'va'}
    cv_def = {r for r in c.defs if r[0] in 'va'}
    if p.kind == 'valu':
        if c.kind == 'mfma' and pv & c.uses: need = max(need, 2)
        if c.kind == 'valu':
            if p.is_trans() and not c.is_trans() and pv & (c.uses): need = max(need, 1)
            if p.is_trans() and c.is_trans() and pv & c.uses: need = max(need, 1)
            if c.op.startswith('v_permlane') and pv & c.uses: need = max(need, 2)
            if c.op.startswith(('v_readlane', 'v_readfirstlane')) and pv & c.uses: need = max(need, 1)
            if c.is_dpp() and pv & c.uses: need = max(need, 2)
            if ps & c.uses:
                need = max(need, 4 if c.op.startswith(('v_readlane', 'v_writelane')) else 2)
        if c.kind in ('vmem', 'vmem_lds') and ps & c.uses: need = max(need, 5)
        if c.kind == 'salu' and ps & c.uses: need = max(need, 1)
        if c.kind == 'mfma' and (regs_of('exec') & p.defs): need = max(need, 4)
    if p.kind == 'mfma':
        big = p.passes == 8
        if c.kind == 'mfma':
            if p.defs & c.srcc:
                if not (p.defs == c.srcc and p.op == c.op): need = max(need, 10 if big else 6)
            if p.defs & c.ab: need = max(need, 12 if big else 8)
            if (p.defs & c.defs) and not (p.defs & c.srcc): need = max(need, 12 if big else 8)
        elif c.kind in ('valu', 'ds', 'vmem', 'vmem_lds'):
            if p.defs & (c.uses | c.defs): need = max(need, 12 if big else 8)
        if c.kind == 'valu' and p.srcc & c.defs: need = max(need, 7 if big else 3)
    if p.kind == 'salu' and ('s', 'm0') in p.defs and c.kind == 'vmem_lds': need = max(need, 1)
    if p.wide_store():
        data = regs_of(p.ops[0]) if p.op.startswith('buffer') else regs_of(p.ops[1])
        if data & c.defs: need = max(need, 2 if c.kind == 'valu' else 1)
    return need

class Prog:
    def __init__(self):
        self.ins = []
    def __call__(self, text):
        for line in text.split('\n'):
            line = line.strip()
            if line: self.ins.append(Ins(line))
    def label(self, name): self.ins.append(Ins(name + ':'))
    def nop(self, n):
        while n > 0:
            k = min(n, 16); self.ins.append(Ins(f's_nop {k-1}')); n -= k
    def fix_hazards(self, verbose=False):
        out = []
        nins = 0
        for c in self.ins:
            if not c.islabel:
                need = 0; dist = 0
                for p in reversed(out):
                    if p.islabel: continue
                    if dist >= 20: break
                    r = required(p, c)
                    if r > dist: need = max(need, r - dist)
                    dist += p.states
                if need:
                    if verbose: print(f'; hazard: +{need} before {c.text}')
                    nins += need
                    k = need
                    while k > 0:
                        m = min(k, 16); out.append(Ins(f's_nop {m-1}')); k -= m
            out.append(c)
        self.ins = out
        return nins
    def check_loop(self, start_label, end_text_idx=None):
        idx = [i for i, x in enumerate(self.ins) if x.islabel and x.text.strip() == start_label + ':'][0]
        last = max(i for i, x in enumerate(self.ins) if (not x.islabel) and x.op.startswith(('s_branch', 's_cbranch')) and x.ops and x.ops[0] == start_label)
        body = [x for x in self.ins[idx:last + 1] if not x.islabel]
        seq = body + body
        probs = []
        n = len(body)
        for ci in range(n, min(2 * n, n + 24)):
            c = seq[ci]; dist = 0
            for pi in range(ci - 1, -1, -1):
                p = seq[pi]
                if dist >= 20: break
                r = required(p, c)
                if r > dist and pi < n: probs.append((p.text, c.text, r, dist))
                dist += p.states
        return probs
    def text(self):
        o = []
        for x in self.ins:
            o.append(x.text if x.islabel else '    ' + x.text)
        return '\n'.join(o) + '\n'
    def max_regs(self):
        mv = ma = ms = -1
        for x in self.ins:
            for k, i in (x.defs | x.uses):
                if isinstance(i, int):
                    if k == 'v': mv = max(mv, i)
                    if k == 'a': ma = max(ma, i)
                    if k == 's': ms = max(ms, i)
        return mv + 1, ma + 1, ms + 1

def kd(name, nv, na, ns):
    acc = max(4, (nv + 3) // 4 * 4)
    nfv = acc + na if na else nv
    return f""".p2align 6
.amdhsa_kernel {name}
  .amdhsa_next_free_vgpr {nfv}
  .amdhsa_next_free_sgpr {ns}
  .amdhsa_accum_offset {acc}
  .amdhsa_group_segment_fixed_size 0
  .amdhsa_kernarg_size 96
  .amdhsa_user_sgpr_count 2
  .amdhsa_user_sgpr_kernarg_segment_ptr 1
  .amdhsa_system_sgpr_workgroup_id_x 1
  .amdhsa_float_denorm_mode_32 3
.end_amdhsa_kernel
"""
```

```python
from asmlib import *
from layout import *

WIMG = 41984
K1_LDS = 2 * WIMG

S_WAVE = 16
SRD_A = 8
SRD_W1 = 12
SRD_W2 = 20
SRD_WS = 28

V_LANE = 0
V_ROW = 1; V_G = 2
V_OFF = 3
V_TR = 4
V_NR = 5
V_NRT = 6
V_T = 8
V_TR2 = 22

V_X = 24
V_F = 44
V_ACC = 84
V_B = 120
V_FR = 140
V_C = 160

def srd(p, base, ka_off_reg, size, add=0):
    if add:
        p(f"s_add_u32 s{base}, s{ka_off_reg}, {add}\ns_addc_u32 s{base+1}, s{ka_off_reg+1}, 0")
    else:
        p(f"s_mov_b32 s{base}, s{ka_off_reg}\ns_mov_b32 s{base+1}, s{ka_off_reg+1}")
    p(f"s_mov_b32 s{base+2}, {size}\ns_mov_b32 s{base+3}, 0x00020000")

def dma_linear(p, srd_base, lds_base, vlane16):
    p(f"s_mul_i32 s24, s{S_WAVE}, 10240")
    for grp in range(3):
        p(f"s_add_u32 s25, s24, {grp * 4096}")
        p(f"s_add_u32 m0, s25, {lds_base}")
        p("s_nop 0")
        for k in range(4 if grp < 2 else 3):
            p(f"buffer_load_dwordx4 v{vlane16}, s[{srd_base}:{srd_base+3}], s25 offen offset:{k * 1024} lds")

def load_rows(p):
    for n in range(4):
        for b in range(2):
            p(f"buffer_load_dwordx2 v[{V_X + 4*n + 2*b}:{V_X + 4*n + 2*b + 1}], v{V_OFF}, s[{SRD_A}:{SRD_A+3}], 0 offen offset:{64*n + 32*b}")
    p(f"buffer_load_dwordx2 v[{V_X+16}:{V_X+17}], v{V_OFF}, s[{SRD_A}:{SRD_A+3}], 0 offen offset:256")

def xsum(p, r, t0, t1, op='v_add_f32'):
    p(f"v_mov_b32 v{t0}, v{r}\nv_mov_b32 v{t1}, v{r}")
    p(f"v_permlane32_swap_b32 v{t0}, v{t1}")
    p(f"{op} v{r}, v{t0}, v{t1}")
    p(f"v_mov_b32 v{t0}, v{r}\nv_mov_b32 v{t1}, v{r}")
    p(f"v_permlane16_swap_b32 v{t0}, v{t1}")
    p(f"{op} v{r}, v{t0}, v{t1}")

def layernorm(p, F, n, dst):
    t = V_T
    p(f"v_pk_add_f32 v[{t}:{t+1}], v[{F}:{F+1}], v[{F+2}:{F+3}]")
    for i in range(4, n, 2): p(f"v_pk_add_f32 v[{t}:{t+1}], v[{t}:{t+1}], v[{F+i}:{F+i+1}]")
    p(f"v_add_f32 v{t}, v{t}, v{t+1}")
    xsum(p, t, t + 2, t + 3)
    p(f"v_mul_f32 v{t}, {fhex(-1.0/144)}, v{t}")
    p(f"v_mov_b32 v{t+1}, v{t}")
    for i in range(0, n, 2): p(f"v_pk_add_f32 v[{F+i}:{F+i+1}], v[{F+i}:{F+i+1}], v[{t}:{t+1}]")
    p(f"v_pk_mul_f32 v[{t+2}:{t+3}], v[{F}:{F+1}], v[{F}:{F+1}]")
    for i in range(2, n, 2): p(f"v_pk_fma_f32 v[{t+2}:{t+3}], v[{F+i}:{F+i+1}], v[{F+i}:{F+i+1}], v[{t+2}:{t+3}]")
    p(f"v_add_f32 v{t+2}, v{t+2}, v{t+3}")
    xsum(p, t + 2, t + 4, t + 5)
    p(f"v_mov_b32 v{t+3}, {fhex(1e-5)}")
    p(f"v_fmac_f32 v{t+3}, {fhex(1.0/144)}, v{t+2}")
    p(f"v_rsq_f32 v{t+2}, v{t+3}")
    p(f"v_mov_b32 v{t+3}, v{t+2}")
    for i in range(0, n, 2):
        p(f"v_pk_mul_f32 v[{F+i}:{F+i+1}], v[{F+i}:{F+i+1}], v[{t+2}:{t+3}]")
        p(f"v_cvt_pk_bf16_f32 v{dst + i//2}, v{F+i}, v{F+i+1}")

def unpack(p, X, F, n):
    for i in range(n):
        p(f"v_lshlrev_b32 v{F + 2*i}, 16, v{X + i}")
        p(f"v_and_b32 v{F + 2*i + 1}, 0xffff0000, v{X + i}")

def gemm_tr(p, lds_base, B, ACC, swap_ab=False, ntiles=9):
    VA = V_TR if lds_base == 0 else V_TR2
    lds_base = 0
    seq = []
    for et in range(ntiles):
        for n in range(5): seq.append((et, n))
    def issue(k):
        et, n = seq[k]; fr = V_FR + (k % 4) * 4
        if n < 4:
            p(f"ds_read_b64_tr_b16 v[{fr}:{fr+1}], v{VA} offset:{lds_base + n * 9216 + et * 32}")
            p(f"ds_read_b64_tr_b16 v[{fr+2}:{fr+3}], v{VA} offset:{lds_base + n * 9216 + 4608 + et * 32}")
        else:
            p(f"ds_read_b64_tr_b16 v[{fr}:{fr+1}], v{VA} offset:{lds_base + 36864 + et * 32}")
    nreads = lambda k: 2 if seq[k][1] < 4 else 1
    for k in range(3): issue(k)
    for k, (et, n) in enumerate(seq):
        after = sum(nreads(j) for j in range(k + 1, min(k + 3, len(seq))))
        p(f"s_waitcnt lgkmcnt({after})")
        fr = V_FR + (k % 4) * 4
        acc = f"v[{ACC + 4*et}:{ACC + 4*et + 3}]"
        c = '0' if n == 0 else acc
        if n < 4:
            w = f"v[{fr}:{fr+3}]"; b = f"v[{B + 4*n}:{B + 4*n + 3}]"; op = 'v_mfma_f32_16x16x32_bf16'
        else:
            w = f"v[{fr}:{fr+1}]"; b = f"v[{B + 16}:{B + 17}]"; op = 'v_mfma_f32_16x16x16_bf16'
        p(f"{op} {acc}, {b}, {w}, {c}" if swap_ab else f"{op} {acc}, {w}, {b}, {c}")
        if k + 3 < len(seq): issue(k + 3)

def gemm_nat(p, lds_base, B, ACC):
    seq = [(et, n) for et in range(9) for n in range(5)]
    def issue(k):
        et, n = seq[k]; fr = V_FR + (k % 4) * 4
        if n < 4: p(f"ds_read_b128 v[{fr}:{fr+3}], v{V_NR} offset:{lds_base + et * 4608 + n * 64}")
        else: p(f"ds_read_b64 v[{fr}:{fr+1}], v{V_NRT} offset:{lds_base + et * 4608}")
    for k in range(3): issue(k)
    for k, (et, n) in enumerate(seq):
        after = min(2, len(seq) - 1 - k)
        p(f"s_waitcnt lgkmcnt({after})")
        fr = V_FR + (k % 4) * 4
        acc = f"v[{ACC + 4*et}:{ACC + 4*et + 3}]"
        c = '0' if n == 0 else acc
        if n < 4: p(f"v_mfma_f32_16x16x32_bf16 {acc}, v[{fr}:{fr+3}], v[{B + 4*n}:{B + 4*n + 3}], {c}")
        else: p(f"v_mfma_f32_16x16x16_bf16 {acc}, v[{fr}:{fr+1}], v[{B + 16}:{B + 17}], {c}")
        if k + 3 < len(seq): issue(k + 3)

def pack_acc(p, ACC, B):
    for i in range(18): p(f"v_cvt_pk_bf16_f32 v{B + i}, v{ACC + 2*i}, v{ACC + 2*i + 1}")

def gelu(p, ACC, n):
    c0 = -2.0 * 0.7978845608028654 * LOG2E; c1 = c0 * 0.044715
    t = V_T
    p(f"v_mov_b32 v{V_C}, {fhex(c0)}\nv_mov_b32 v{V_C+1}, {fhex(c0)}\nv_mov_b32 v{V_C+2}, {fhex(c1)}\nv_mov_b32 v{V_C+3}, {fhex(c1)}")
    p(f"v_mov_b32 v{V_C+4}, 1.0\nv_mov_b32 v{V_C+5}, 1.0")
    for i in range(0, n, 4):
        for u in range(2):
            x = ACC + i + 2 * u; tt = t + 2 * u
            p(f"v_pk_mul_f32 v[{tt}:{tt+1}], v[{x}:{x+1}], v[{x}:{x+1}]")
        for u in range(2):
            x = ACC + i + 2 * u; tt = t + 2 * u
            p(f"v_pk_fma_f32 v[{tt}:{tt+1}], v[{tt}:{tt+1}], v[{V_C+2}:{V_C+3}], v[{V_C}:{V_C+1}]")
        for u in range(2):
            x = ACC + i + 2 * u; tt = t + 2 * u
            p(f"v_pk_mul_f32 v[{tt}:{tt+1}], v[{tt}:{tt+1}], v[{x}:{x+1}]")
        for u in range(4): p(f"v_exp_f32 v{t+u}, v{t+u}")
        for u in range(2):
            tt = t + 2 * u
            p(f"v_pk_add_f32 v[{tt}:{tt+1}], v[{tt}:{tt+1}], v[{V_C+4}:{V_C+5}]")
        for u in range(4): p(f"v_rcp_f32 v{t+u}, v{t+u}")
        for u in range(2):
            x = ACC + i + 2 * u; tt = t + 2 * u
            p(f"v_pk_mul_f32 v[{x}:{x+1}], v[{x}:{x+1}], v[{tt}:{tt+1}]")

def lane_setup(p):
    p(f"""
    v_lshrrev_b32 v{V_T}, 6, v0
    v_and_b32 v{V_LANE}, 63, v0
    v_and_b32 v{V_ROW}, 15, v0
    v_readfirstlane_b32 s{S_WAVE}, v{V_T}
    v_lshrrev_b32 v{V_G}, 4, v{V_LANE}
    v_lshlrev_b32 v7, 4, v{V_LANE}              ; lane*16
    v_bfe_u32 v{V_T}, v{V_LANE}, 2, 2           ; rr
    v_lshl_add_u32 v{V_T}, v{V_G}, 2, v{V_T}    ; 4g+rr
    v_mul_u32_u24 v{V_TR}, 288, v{V_T}
    v_and_b32 v{V_T}, 3, v{V_LANE}
    v_lshl_add_u32 v{V_TR}, v{V_T}, 3, v{V_TR}
    v_mul_u32_u24 v{V_T}, 288, v{V_ROW}
    v_lshl_add_u32 v{V_NR}, v{V_G}, 4, v{V_T}
    v_lshl_add_u32 v{V_NRT}, v{V_G}, 3, v{V_T}
    v_add_u32 v{V_NRT}, {256 + WIMG}, v{V_NRT}
    v_add_u32 v{V_NR}, {WIMG}, v{V_NR}
    v_add_u32 v{V_TR2}, {WIMG}, v{V_TR}
    """)

def gen_k1(cfg=None):
    cfg = cfg or {}
    p = Prog()
    p(f"""
    s_cmp_ge_u32 s2, 256
    s_cbranch_scc1 Lk1_done
    s_load_dwordx16 s[36:51], s[0:1], 0
    s_load_dwordx2 s[52:53], s[0:1], 64         ; w_merge
    s_load_dwordx2 s[54:55], s[0:1], 88         ; ws
    """)
    lane_setup(p)
    p("s_waitcnt lgkmcnt(0)")
    srd(p, SRD_WS, 54, 0x10000000)
    p(f"""
    s_cmp_ge_u32 s2, 250
    s_cbranch_scc1 Lk1_w
    s_cmp_ge_u32 s2, 125
    s_cbranch_scc1 Lk1_ug
    """)
    srd(p, SRD_A, 36, 2304000)
    srd(p, SRD_W1, 38, 41472)
    srd(p, SRD_W2, 40, 41472)
    p(f"""
    s_lshl_b32 s17, s2, 6
    s_lshl_b32 s18, s{S_WAVE}, 4
    s_add_u32 s17, s17, s18                     ; R0
    v_add_u32 v{V_T}, s17, v{V_ROW}
    v_mul_u32_u24 v{V_OFF}, 288, v{V_T}
    v_lshl_add_u32 v{V_OFF}, v{V_G}, 3, v{V_OFF}
    """)
    load_rows(p)
    dma_linear(p, SRD_W1, 0, 7)
    dma_linear(p, SRD_W2, WIMG, 7)
    p("s_waitcnt vmcnt(22)")
    unpack(p, V_X, V_F, 18)
    layernorm(p, V_F, 36, V_B)
    p(f"""
    s_lshr_b32 s18, s17, 5                      ; tile G
    s_mul_i32 s18, s18, {TILE}
    s_add_u32 s18, s18, {WS_XA}
    s_and_b32 s19, s17, 16
    v_add_u32 v{V_T}, s19, v{V_ROW}
    v_lshlrev_b32 v{V_T+1}, 2, v{V_G}
    v_xor_b32 v{V_T+1}, v{V_T+1}, v{V_T}        ; r ^ 4g
    v_lshlrev_b32 v{V_T+1}, 4, v{V_T+1}
    v_lshl_add_u32 v{V_T+1}, v{V_G}, 9, v{V_T+1}
    v_lshrrev_b32 v{V_T+2}, 1, v{V_G}           ; g>>1
    v_lshlrev_b32 v{V_T+3}, 2, v{V_T+2}
    v_xor_b32 v{V_T+3}, v{V_T+3}, v{V_T}
    v_lshlrev_b32 v{V_T+3}, 4, v{V_T+3}
    v_lshl_add_u32 v{V_T+3}, v{V_T+2}, 9, v{V_T+3}
    v_and_b32 v{V_T+4}, 1, v{V_G}
    v_lshl_add_u32 v{V_T+3}, v{V_T+4}, 3, v{V_T+3}
    v_add_u32 v{V_T+3}, 8192, v{V_T+3}
    v_add_u32 v{V_T+5}, 4096, v{V_T+1}
    """)
    for n in range(4):
        vo = V_T + 1 if n < 2 else V_T + 5
        p(f"buffer_store_dwordx4 v[{V_B + 4*n}:{V_B + 4*n + 3}], v{vo}, s[{SRD_WS}:{SRD_WS+3}], s18 offen offset:{(n % 2) * 2048}")
    p(f"buffer_store_dwordx2 v[{V_B+16}:{V_B+17}], v{V_T+3}, s[{SRD_WS}:{SRD_WS+3}], s18 offen")
    XA = V_C + 8
    for i in range(18): p(f"v_mov_b32 v{XA + i}, v{V_B + i}")
    p("s_waitcnt vmcnt(5)\ns_barrier")
    gemm_tr(p, 0, V_B, V_ACC)
    pack_acc(p, V_ACC, V_B)
    for n in range(4):
        b = V_B + 4 * n
        p(f"v_permlane32_swap_b32 v{b}, v{b+2}\nv_permlane32_swap_b32 v{b+1}, v{b+3}")
        p(f"v_permlane16_swap_b32 v{b}, v{b+2}\nv_permlane16_swap_b32 v{b+1}, v{b+3}")
    gemm_nat(p, 0, V_B, V_ACC)
    p(f"v_mov_b32 v{V_C}, {fhex(LOG2E / 12.0)}\nv_mov_b32 v{V_C+1}, {fhex(LOG2E / 12.0)}")
    for i in range(0, 36, 2): p(f"v_pk_mul_f32 v[{V_ACC+i}:{V_ACC+i+1}], v[{V_ACC+i}:{V_ACC+i+1}], v[{V_C}:{V_C+1}]")
    pack_acc(p, V_ACC, V_B)
    acc = f"v[{V_ACC}:{V_ACC+3}]"
    for n in range(4):
        p(f"v_mfma_f32_16x16x32_bf16 {acc}, v[{XA + 4*n}:{XA + 4*n + 3}], v[{V_B + 4*n}:{V_B + 4*n + 3}], {'0' if n == 0 else acc}")
    p(f"v_mfma_f32_16x16x16_bf16 {acc}, v[{XA+16}:{XA+17}], v[{V_B+16}:{V_B+17}], {acc}")
    p(f"""
    s_lshr_b32 s18, s17, 5
    s_mul_i32 s18, s18, {TILE}
    s_add_u32 s18, s18, {WS_QF}
    v_add_u32 v{V_T}, s19, v{V_ROW}
    v_lshlrev_b32 v{V_T}, 4, v{V_T}
    v_lshrrev_b32 v{V_T+2}, 1, v{V_G}
    v_and_b32 v{V_T+4}, 1, v{V_G}
    v_lshl_add_u32 v{V_T+1}, v{V_T+2}, 10, v{V_T}
    v_lshl_add_u32 v{V_T+1}, v{V_T+4}, 9, v{V_T+1}
    v_lshl_add_u32 v{V_T+3}, v{V_T+2}, 9, v{V_T}
    v_lshl_add_u32 v{V_T+3}, v{V_T+4}, 3, v{V_T+3}
    v_add_u32 v{V_T+3}, 8192, v{V_T+3}
    v_add_u32 v{V_T+5}, 4096, v{V_T+1}
    """)
    for n in range(4):
        vo = V_T + 1 if n < 2 else V_T + 5
        p(f"buffer_store_dwordx4 v[{V_B + 4*n}:{V_B + 4*n + 3}], v{vo}, s[{SRD_WS}:{SRD_WS+3}], s18 offen offset:{(n % 2) * 2048}")
    p(f"buffer_store_dwordx2 v[{V_B+16}:{V_B+17}], v{V_T+3}, s[{SRD_WS}:{SRD_WS+3}], s18 offen")
    p(f"""
    v_max3_f32 v{V_T+6}, v{V_ACC}, v{V_ACC+1}, v{V_ACC+2}
    v_max_f32 v{V_T+6}, v{V_T+6}, v{V_ACC+3}
    """)
    xsum(p, V_T + 6, V_T + 7, V_T + 8, 'v_max_f32')
    p(f"""
    v_sub_f32 v{V_T+6}, 0, v{V_T+6}
    v_add_u32 v{V_T+7}, s17, v{V_ROW}
    v_lshlrev_b32 v{V_T+7}, 2, v{V_T+7}
    s_mov_b32 s18, {WS_NM}
    s_mov_b64 exec, 0xffff
    buffer_store_dword v{V_T+6}, v{V_T+7}, s[{SRD_WS}:{SRD_WS+3}], s18 offen
    s_branch Lk1_end
    """)
    p.label('Lk1_ug')
    srd(p, SRD_A, 36, 2304000)
    srd(p, SRD_W1, 46, 82944)
    p(f"""
    s_sub_u32 s17, s2, 125
    s_lshl_b32 s17, s17, 6
    s_lshl_b32 s18, s{S_WAVE}, 4
    s_add_u32 s17, s17, s18                     ; R0
    v_add_u32 v{V_T}, s17, v{V_ROW}
    v_mul_u32_u24 v{V_OFF}, 288, v{V_T}
    v_lshl_add_u32 v{V_OFF}, v{V_G}, 3, v{V_OFF}
    """)
    load_rows(p)
    p(f"""
    v_mul_u32_u24 v{V_T}, 3641, v{V_LANE}
    v_lshrrev_b32 v{V_T}, 16, v{V_T}            ; lane/18
    v_mul_u32_u24 v{V_T+1}, 18, v{V_T}
    v_sub_u32 v{V_T+1}, v{V_LANE}, v{V_T+1}     ; lane%18
    v_mul_u32_u24 v{V_T}, 576, v{V_T}
    v_lshl_add_u32 v{V_T}, v{V_T+1}, 4, v{V_T}
    v_add_u32 v{V_T+1}, 288, v{V_T}
    s_mul_i32 s24, s{S_WAVE}, {12 * 1728}
    s_mul_i32 s25, s{S_WAVE}, {12 * 864}
    s_mov_b32 s26, 0xffffffff
    s_mov_b32 s27, 0x003fffff
    s_mov_b64 exec, s[26:27]
    """)
    for k in range(12):
        for hf in range(2):
            p(f"s_add_u32 m0, s25, {hf * WIMG + k * 864}")
            p(f"s_add_u32 s33, s24, {k * 1728}" if hf == 0 else "s_nop 0")
            p(f"buffer_load_dwordx4 v{V_T + hf}, s[{SRD_W1}:{SRD_W1+3}], s33 offen lds")
    p("s_mov_b64 exec, -1")
    p("s_waitcnt vmcnt(24)")
    unpack(p, V_X, V_F, 18)
    layernorm(p, V_F, 36, V_B)
    p("s_waitcnt vmcnt(0)\ns_barrier")
    gemm_tr(p, 0, V_B, V_ACC)
    gelu(p, V_ACC, 36)
    UB = V_F
    pack_acc(p, V_ACC, UB)
    p(f"""
    v_add_u32 v{V_T}, s17, v{V_ROW}
    v_mul_u32_u24 v{V_T}, 288, v{V_T}
    v_lshl_add_u32 v{V_T+8}, v{V_G}, 3, v{V_T}   ; row*288 + 8g
    s_mov_b32 s18, {WS_U}
    """)
    for et in range(9):
        p(f"buffer_store_dwordx2 v[{UB + 2*et}:{UB + 2*et + 1}], v{V_T+8}, s[{SRD_WS}:{SRD_WS+3}], s18 offen offset:{32 * et}")
    gemm_tr(p, WIMG, V_B, V_ACC)
    gelu(p, V_ACC, 36)
    GB = V_X
    layernorm(p, V_ACC, 36, GB)
    p(f"""
    s_cmp_ge_u32 s17, 4000
    s_mov_b32 s19, {8 * 288}
    s_cselect_b32 s19, {24 * 288}, s19
    s_add_u32 s18, s19, {WS_G}
    """)
    for et in range(9):
        p(f"buffer_store_dwordx2 v[{GB + 2*et}:{GB + 2*et + 1}], v{V_T+8}, s[{SRD_WS}:{SRD_WS+3}], s18 offen offset:{32 * et}")
    p(f"""
    s_cmp_eq_u32 s2, 125
    s_cbranch_scc0 Lk1_end
    s_mov_b32 s19, 0
    s_cmp_eq_u32 s{S_WAVE}, 1
    s_cselect_b32 s19, {4008 * 288}, s19
    s_cmp_eq_u32 s{S_WAVE}, 2
    s_cselect_b32 s19, {4016 * 288}, s19
    s_cmp_eq_u32 s{S_WAVE}, 3
    s_cselect_b32 s19, {(4016 + 4008) * 288}, s19
    s_add_u32 s18, s19, {WS_G}
    v_mov_b32 v{V_T}, 0
    v_mov_b32 v{V_T+1}, 0
    v_mov_b32 v{V_T+2}, 0
    v_mov_b32 v{V_T+3}, 0
    buffer_store_dwordx4 v[{V_T}:{V_T+3}], v7, s[{SRD_WS}:{SRD_WS+3}], s18 offen
    buffer_store_dwordx4 v[{V_T}:{V_T+3}], v7, s[{SRD_WS}:{SRD_WS+3}], s18 offen offset:1024
    s_mov_b64 exec, 0xffff
    buffer_store_dwordx4 v[{V_T}:{V_T+3}], v7, s[{SRD_WS}:{SRD_WS+3}], s18 offen offset:2048
    s_branch Lk1_end
    """)
    p.label('Lk1_w')
    p(f"""
    s_cmp_ge_u32 s2, 253
    s_cbranch_scc1 Lk1_wd
    """)
    srd(p, SRD_A, 42, 41472)
    srd(p, SRD_W1, 44, 41472)
    srd(p, SRD_W2, 52, 41472)
    p(f"""
    s_sub_u32 s17, s2, 250
    s_mov_b32 s34, {WS_WFO}
    s_mov_b32 s35, 1
    s_branch Lk1_wc
    """)
    p.label('Lk1_wd')
    srd(p, SRD_A, 50, 41472)
    srd(p, SRD_W1, 52, 41472)
    srd(p, SRD_W2, 52, 41472, add=41472)
    p(f"""
    s_sub_u32 s17, s2, 253
    s_mov_b32 s34, {WS_WFD}
    s_mov_b32 s35, 0
    """)
    p.label('Lk1_wc')
    p(f"""
    s_mul_i32 s17, s17, 3
    s_add_u32 s17, s17, s{S_WAVE}
    s_lshl_b32 s18, s17, 4
    v_add_u32 v{V_T}, s18, v{V_ROW}
    v_mul_u32_u24 v{V_OFF}, 288, v{V_T}
    v_lshl_add_u32 v{V_OFF}, v{V_G}, 3, v{V_OFF}
    """)
    load_rows(p)
    dma_linear(p, SRD_W1, 0, 7)
    dma_linear(p, SRD_W2, WIMG, 7)
    p("s_waitcnt vmcnt(0)\ns_barrier")
    p(f"""
    s_cmp_eq_u32 s{S_WAVE}, 3
    s_cbranch_scc1 Lk1_end
    s_cmp_eq_u32 s35, 0
    s_cbranch_scc1 Lk1_wb
    """)
    gemm_tr(p, 0, V_X, V_ACC)
    pack_acc(p, V_ACC, V_X)
    p.label('Lk1_wb')
    gemm_tr(p, WIMG, V_X, V_ACC, swap_ab=True)
    pack_acc(p, V_ACC, V_B)
    p(f"""
    s_lshr_b32 s18, s17, 1
    s_lshl_b32 s18, s18, 10                     ; n*1024
    s_and_b32 s19, s17, 1
    s_lshl_b32 s19, s19, 3
    s_add_u32 s18, s18, s19
    v_add_u32 v{V_T}, s18, v7                   ; n*1024 + lane*16 + 8b
    v_lshlrev_b32 v{V_T+1}, 3, v{V_LANE}
    v_add_u32 v{V_T+1}, 4096, v{V_T+1}
    s_cmp_eq_u32 s17, 8
    s_cbranch_scc0 Lk1_wst
    v_mov_b32 v{V_T}, v{V_T+1}
    """)
    p.label('Lk1_wst')
    for ot in range(9):
        p(f"s_add_u32 s18, s34, {ot * 4608}")
        p(f"buffer_store_dwordx2 v[{V_B + 2*ot}:{V_B + 2*ot + 1}], v{V_T}, s[{SRD_WS}:{SRD_WS+3}], s18 offen")
    p.label('Lk1_end')
    p("s_waitcnt vmcnt(0)")
    p.label('Lk1_done')
    p("s_endpgm")
    return p

if __name__ == '__main__':
    p = gen_k1()
    n = p.fix_hazards(verbose=False)
    print('nops', n, p.max_regs(), 'instrs', len(p.ins))
```

```python
from asmlib import *
from layout import *


NBUF = 4
WAVE_LDS = NBUF * TILE
ONES_OFF = 4 * WAVE_LDS
K2_LDS = ONES_OFF + 4 * 512

A_O = 0
A_Q = 160
def Oreg(qs, dt): return a(A_O + (qs * 5 + dt) * 16, 16)
def Qreg(qs, st): return a(A_Q + (qs * 9 + st) * 4, 4)
V_S = 0
V_NM = 64
V_P = 96
V_K = 112
V_V = 124
V_KA = 144
V_VA = 146
V_V4 = 148
V_DM = 156
V_T = 160
def Sreg(par, qs, i=0, n=16): return v(V_S + (par * 2 + qs) * 16 + i, n)
def NMreg(qs): return v(V_NM + qs * 16, 16)
def Preg(qs, t): return v(V_P + qs * 8 + t * 4, 4)
def Kreg(st): return v(V_K + (st % 3) * 4, 4)
def Vreg(f, b=None):
    base = V_V + (f % 5) * 4
    return v(base, 4) if b is None else v(base + 2 * b, 2)

S_SRD_XA = 8
S_TOFF = 12
S_LDSW = 13
S_CNT = 14

def k_read(buf, st):
    return f"ds_read_b128 {Kreg(st)}, {v(V_KA + (st & 1))} offset:{buf * TILE + st * 1024}"
def v_read(buf, f, b):
    dt, t = f % 5, f // 5
    if dt < 4:
        return f"ds_read_b64_tr_b16 {Vreg(f, b)}, {v(V_VA + b)} offset:{buf * TILE + dt * 2048 + t * 256}"
    return f"ds_read_b64_tr_b16 {Vreg(f, b)}, {v(V_V4 + buf * 2 + b)} offset:{t * 256}"

def exp_stream(par):
    groups = []
    for t in range(2):
        for k in range(4):
            for qs in range(2):
                r0 = V_S + (par * 2 + qs) * 16 + t * 8 + 2 * k
                groups.append((t, r0, V_P + qs * 8 + t * 4 + k))
    out = []
    for gi, (t, r0, pd) in enumerate(groups):
        out.append((8, f"v_exp_f32 v{r0}, v{r0}", t, False))
        if gi > 0:
            pt, pr, ppd = groups[gi - 1]
            out.append((4, f"v_cvt_pk_bf16_f32 v{ppd}, v{pr}, v{pr+1}", pt, False))
        out.append((8, f"v_exp_f32 v{r0+1}, v{r0+1}", t, False))
    pt, pr, ppd = groups[-1]
    out.append((4, f"v_cvt_pk_bf16_f32 v{ppd}, v{pr}, v{pr+1}", pt, True))
    return out

def body(p, u, cfg):
    par = u % 2; parn = 1 - par
    bV = u; bK = (u + 1) % NBUF; bKn = (u + 2) % NBUF; bD = (u + 3) % NBUF
    slots = [[] for _ in range(38)]
    nop = lambda on, t: t if on else "s_nop 0"
    for st in range(3, 9): slots[2 * st - 5].append((4, nop(cfg.get('kr', True), k_read(bK, st)), ('K', st)))
    for st in range(3): slots[33 + 2 * st].append((4, nop(cfg.get('kr', True), k_read(bKn, st)), ('Kn', st)))
    for f in range(10):
        for b in range(2): slots[18 + 2 * f - 6 + b].append((4, nop(cfg.get('vr', True), v_read(bV, f, b)), ('V', f, b)))
    d0 = cfg.get('dma_slot', 23)
    if cfg.get('dma', True):
        for pc in range(9):
            grp, o = pc // 4, (pc % 4) * 1024
            sl = d0 + pc
            if pc % 4 == 0:
                slots[sl - 1].append((4, f"s_add_u32 m0, {s(S_LDSW)}, {bD * TILE + grp * 4096}", ('m0',)))
            slots[sl].append((4, f"buffer_load_dwordx4 {v(V_DM + grp)}, {s(S_SRD_XA, 4)}, {s(S_TOFF)} offen offset:{o} lds", ('D', pc)))
        slots[d0 + 9].append((4, f"s_add_u32 {s(S_TOFF)}, {s(S_TOFF)}, {TILE}", ('s',)))
    ex = exp_stream(par) if cfg.get('exp', True) else []
    dl = {0: cfg.get('dl0', 15), 1: cfg.get('dl1', 25)}
    fixed = [8 + sum(x[0] for x in sl) for sl in slots]
    total_ex = sum(x[0] for x in ex)
    last = dl[1]
    lo, hi = 8, 64
    for _ in range(30):
        mid = (lo + hi) / 2
        if sum(max(0, mid - fixed[k]) for k in range(last + 1)) >= total_ex: hi = mid
        else: lo = mid
    level = hi
    qi = 0; credit = 0
    for k in range(last + 2):
        credit += max(0, level - fixed[k]) if k <= last else 100
        placed = 0
        while qi < len(ex) and (credit >= ex[qi][0] - 2 or any(e[2] <= 1 and k >= dl[e[2]] for e in ex[qi:qi+1])):
            if ex[qi][3] and placed > 0: break
            slots[k].append((ex[qi][0], ex[qi][1], ('E',))); credit -= ex[qi][0]; qi += 1; placed += 1
    assert qi == len(ex), (qi, len(ex))
    for k in range(38):
        for x in slots[k]:
            if x[1].startswith('v_cvt_pk'):
                pd = int(x[1].split()[1].strip('v,')) - V_P
                t = (pd % 8) // 4
                assert k <= (16 if t == 0 else 26), (k, x)
    mf = []
    for st in range(9):
        for qs in range(2):
            c = NMreg(qs) if st == 0 else Sreg(parn, qs)
            mf.append((f"v_mfma_f32_32x32x16_bf16 {Sreg(parn, qs)}, {Kreg(st)}, {Qreg(qs, st)}, {c}", ('K', st) if qs == 0 else None))
    for t in range(2):
        for dt in range(5):
            for qs in range(2):
                f = t * 5 + dt
                mf.append((f"v_mfma_f32_32x32x16_bf16 {Oreg(qs, dt)}, {Vreg(f)}, {Preg(qs, t)}, {Oreg(qs, dt)}", ('V', f, 1) if qs == 0 else None))
    order = [('K', 0), ('K', 1), ('K', 2)]
    pos = {}
    seq = []
    for st in range(3): seq.append((('K', st), -1))
    for k in range(38):
        for x in slots[k]:
            if x[2][0] in ('K', 'V', 'Kn'): seq.append((x[2], k))
    ndma_before = 0
    for k in range(38):
        text, need = mf[k]
        if cfg.get('nodt4') and k >= 18 and ((k - 18) // 2) % 5 == 4: text = 's_nop 7'
        if cfg.get('noqk') and k < 18: text = 's_nop 7'
        if cfg.get('nopv') and k >= 18: text = 's_nop 7'
        if need is not None:
            idx = [i for i, (tg, sl) in enumerate(seq) if tg == need][0]
            n_after = sum(1 for i, (tg, sl) in enumerate(seq) if i > idx and sl < k)
            p(f"s_waitcnt lgkmcnt({n_after})")
        if cfg.get('m16') and text.startswith('v_mfma'):
            import re as _re
            m = _re.match(r'v_mfma_f32_32x32x16_bf16 ([va])\[(\d+):\d+\], (\S+), (\S+), ([va])\[(\d+):\d+\]', text)
            kd_, d0_, A_, B_, kc_, c0_ = m.group(1), int(m.group(2)), m.group(3).rstrip(','), m.group(4).rstrip(','), m.group(5), int(m.group(6))
            stp = (k // 2) if k < 18 else ((k - 18) // 10)
            q0 = (2 * stp) % 4
            first = (k < 18 and stp < 2)
            t2 = []
            for qq in (q0, q0 + 1):
                cb = (V_NM + (k % 2) * 16 + qq * 4) if first else d0_ + qq * 4
                t2.append(f"v_mfma_f32_16x16x32_bf16 {kd_}[{d0_+qq*4}:{d0_+qq*4+3}], {A_}, {B_}, {kd_}[{cb}:{cb+3}]")
            fill = list(slots[k])
            p(t2[0])
            half = sum(x[0] for x in fill) / 2; acc = 0; rest = []
            for x in fill:
                if acc < half and not rest and x[2][0] == 'E':
                    p(x[1]); acc += x[0]
                else: rest.append(x)
            p(t2[1])
            slots[k] = rest
        else:
            p(text)
        if cfg.get('pad'):
            for _ in range(cfg['pad']): p('s_nop 0')
        for x in slots[k]:
            if x[2] == ('Kn', 0):
                nd = sum(1 for kk in range(k + 1) for y in slots[kk] if y[2][0] == 'D' and slots[kk].index(y) >= 0 and (kk < k or slots[kk].index(y) < slots[kk].index(x)))
                if cfg.get('dma', True): p(f"s_waitcnt vmcnt({nd})")
            p(x[1])
    return [8 + sum(x[0] for x in sl) for sl in slots]

def gen_k2(cfg=None):
    cfg = cfg or {}
    p = Prog()
    NWG = 252
    p(f"""
    s_cmp_ge_u32 s2, {NWG}
    s_cbranch_scc1 Lk2_done
    s_load_dwordx2 s[4:5], s[0:1], 88
    v_lshrrev_b32 v{V_T}, 6, v0
    v_and_b32 v0, 63, v0
    s_nop 0
    v_readfirstlane_b32 s16, v{V_T}
    s_cmp_ge_u32 s2, 126
    s_cselect_b32 s17, 1, 0                    ; batch
    s_mul_i32 s18, s17, 126
    s_sub_u32 s18, s2, s18
    s_lshr_b32 s19, s18, 1                     ; qt
    s_and_b32 s20, s18, 1                      ; half
    s_lshl_b32 s21, s20, 2
    s_add_u32 s21, s21, s16
    s_mul_i32 s22, s21, 125
    s_lshr_b32 s22, s22, 3
    s_add_u32 s23, s21, 1
    s_mul_i32 s23, s23, 125
    s_lshr_b32 s23, s23, 3
    s_sub_u32 {s(S_CNT)}, s23, s22
    s_mul_i32 s24, s17, 125
    s_add_u32 s22, s22, s24
    s_mul_i32 s22, s22, {TILE}
    s_lshl_b32 s25, s19, 1
    s_add_u32 s25, s25, s24                    ; q tile G0
    s_mul_i32 {s(S_LDSW)}, s16, {WAVE_LDS}
    s_waitcnt lgkmcnt(0)
    s_add_u32 s8, s4, s22
    s_addc_u32 s9, s5, 0
    s_mul_i32 s10, {s(S_CNT)}, {TILE}
    s_mov_b32 s11, 0x00020000
    s_mov_b32 s28, s4
    s_mov_b32 s29, s5
    s_mov_b32 s30, 0x10000000
    s_mov_b32 s31, 0x00020000
    v_lshlrev_b32 v{V_DM}, 4, v0
    v_add_u32 v{V_DM+1}, 4096, v{V_DM}
    v_add_u32 v{V_DM+2}, 8192, v{V_DM}
    s_mov_b32 {s(S_TOFF)}, 0
    """)
    for tl in range(3):
        for pc in range(9):
            grp, o = pc // 4, (pc % 4) * 1024
            if pc % 4 == 0: p(f"s_add_u32 m0, {s(S_LDSW)}, {tl * TILE + grp * 4096}\ns_nop 0")
            p(f"buffer_load_dwordx4 {v(V_DM + grp)}, {s(S_SRD_XA, 4)}, {s(S_TOFF)} offen offset:{o} lds")
        p(f"s_add_u32 {s(S_TOFF)}, {s(S_TOFF)}, {TILE}")
    p(f"""
    s_mul_i32 s26, s25, {TILE}
    s_add_u32 s26, s26, {WS_QF}
    s_add_u32 s27, s26, {TILE}
    """)
    for qs in range(2):
        for st in range(9):
            grp, o = st // 4, (st % 4) * 1024
            p(f"buffer_load_dwordx4 {Qreg(qs, st)}, {v(V_DM + grp)}, s[28:31], s{26 + qs} offen offset:{o}")
    p(f"""
    v_and_b32 v{V_T}, 31, v0
    v_lshlrev_b32 v{V_T}, 2, v{V_T}
    s_lshl_b32 s26, s25, 7
    s_add_u32 s26, s26, {WS_NM}
    buffer_load_dword v{V_T+1}, v{V_T}, s[28:31], s26 offen
    buffer_load_dword v{V_T+2}, v{V_T}, s[28:31], s26 offen offset:128
    """)
    T = V_T + 4
    p(f"""
    v_and_b32 v{T}, 31, v0                     ; r
    v_lshrrev_b32 v{T+1}, 5, v0                ; h
    """)
    for e in range(2):
        p(f"""
        v_lshlrev_b32 v{T+2}, 2, v{T+1}
        v_add_u32 v{T+2}, {8 * e}, v{T+2}
        v_xor_b32 v{T+2}, v{T+2}, v{T}
        v_lshlrev_b32 v{T+2}, 4, v{T+2}
        v_lshl_add_u32 v{T+2}, v{T+1}, 9, v{T+2}
        v_add_u32 v{V_KA + e}, {s(S_LDSW)}, v{T+2}
        """)
    p(f"""
    v_bfe_u32 v{T+2}, v0, 4, 1                 ; g
    v_bfe_u32 v{T+3}, v0, 1, 1                 ; c>>1
    v_lshl_add_u32 v{T+4}, v{T+2}, 1, v{T+3}   ; jl
    v_bfe_u32 v{T+5}, v0, 2, 2                 ; rr
    v_and_b32 v{T+6}, 1, v0                    ; c&1
    v_xor_b32 v{T+7}, v{T+1}, v{T+3}           ; h ^ (jl&1)
    v_lshl_add_u32 v{T+5}, v{T+7}, 2, v{T+5}   ; 4*(..)+rr
    s_lshl_b32 s26, s16, 9
    s_add_u32 s26, s26, {ONES_OFF}
    v_cmp_eq_u32 vcc, 1, v{T+2}
    """)
    for b in range(2):
        p(f"""
        v_xor_b32 v{T+7}, {b}, v{T+2}              ; b ^ (jl>>1)
        v_lshl_add_u32 v{T+7}, v{T+7}, 3, v{T+5}
        v_lshlrev_b32 v{T+7}, 4, v{T+7}
        v_lshl_add_u32 v{T+7}, v{T+6}, 3, v{T+7}   ; + (c&1)*8
        v_lshl_add_u32 v{T+8}, v{T+4}, 9, v{T+7}   ; + jl*512
        v_add_u32 v{V_VA + b}, {s(S_LDSW)}, v{T+8}
        v_add_u32 v{T+9}, s26, v{T+7}
        """)
        for buf in range(NBUF):
            p(f"""
            v_add_u32 v{T+10}, {buf * TILE + 8192}, v{V_VA + b}
            v_cndmask_b32 v{V_V4 + buf * 2 + b}, v{T+10}, v{T+9}, vcc
            """)
    p(f"""
    v_lshlrev_b32 v{T+2}, 3, v0
    v_add_u32 v{T+2}, s26, v{T+2}
    v_mov_b32 v{T+4}, 0x3f803f80
    v_mov_b32 v{T+5}, 0x3f803f80
    ds_write_b64 v{T+2}, v[{T+4}:{T+5}]
    """)
    for i in range(160): p(f"v_accvgpr_write_b32 a{A_O + i}, 0")
    p("s_waitcnt vmcnt(0)")
    for qs in range(2):
        for i in range(16): p(f"v_sub_f32 v{V_NM + qs * 16 + i}, 0, v{V_T + 1 + qs}" if False else f"v_mov_b32 v{V_NM + qs * 16 + i}, v{V_T + 1 + qs}")
    p("s_waitcnt lgkmcnt(0)")
    for st in range(9):
        p(k_read(0, st))
        p("s_waitcnt lgkmcnt(0)")
        for qs in range(2):
            c = NMreg(qs) if st == 0 else Sreg(0, qs)
            p(f"v_mfma_f32_32x32x16_bf16 {Sreg(0, qs)}, {Kreg(st)}, {Qreg(qs, st)}, {c}")
    for st in range(3): p(k_read(1, st))
    p("s_nop 7\ns_nop 7")
    if cfg.get('stamp'): p("s_memtime s[40:41]\ns_memrealtime s[44:45]")
    p.label('Lk2_loop')
    for u in range(NBUF):
        loads = body(p, u, cfg)
        if u == 0 and cfg.get('verbose'): print('slot loads', loads)
        p(f"s_sub_u32 {s(S_CNT)}, {s(S_CNT)}, 1")
        p(f"s_cmp_eq_u32 {s(S_CNT)}, 0")
        if u < NBUF - 1: p("s_cbranch_scc1 Lk2_end")
        else: p("s_cbranch_scc0 Lk2_loop")
    p.label('Lk2_end')
    if cfg.get('stamp'): p("s_memtime s[42:43]\ns_memrealtime s[46:47]")
    p("s_nop 7\ns_nop 7\ns_waitcnt vmcnt(0) lgkmcnt(0)")
    p(f"""
    s_lshl_b32 s26, s2, 2
    s_add_u32 s26, s26, s16
    s_mul_i32 s26, s26, {40 * 1024}
    s_add_u32 s26, s26, {WS_PART}
    """)
    n = 0
    for qs in range(2):
        for dt in range(5):
            for i in range(4):
                if n % 4 == 0 and n > 0: p("s_add_u32 s26, s26, 4096")
                p(f"buffer_store_dwordx4 {a(A_O + (qs * 5 + dt) * 16 + 4 * i, 4)}, {v(V_DM)}, s[28:31], s26 offen offset:{(n % 4) * 1024}")
                n += 1
    if cfg.get('stamp'):
        p(f"""
        s_sub_u32 s42, s42, s40
        s_sub_u32 s46, s46, s44
        v_mov_b32 v{T}, s42
        v_mov_b32 v{T+1}, s46
        v_mov_b32 v{T+2}, s44
        v_mov_b32 v{T+3}, 0
        s_lshl_b32 s26, s2, 2
        s_add_u32 s26, s26, s16
        s_lshl_b32 s26, s26, 4
        s_add_u32 s26, s26, 0x800000
        v_mov_b32 v{T+4}, 0
        s_mov_b64 exec, 1
        buffer_store_dwordx4 v[{T}:{T+3}], v{T+4}, s[28:31], s26 offen
        """)
    p("s_waitcnt vmcnt(0)")
    p.label('Lk2_done')
    p("s_endpgm")
    return p

if __name__ == '__main__':
    import sys
    p = gen_k2({'verbose': True, 'stamp': True})
    n = p.fix_hazards(verbose=True)
    print('nops inserted', n, 'loop hazards', p.check_loop('Lk2_loop'), p.max_regs())
```

```python
from asmlib import *
from layout import *
from k1 import srd
LDS_O = 0
LDS_Y = 32 * 288 + 64
K3_LDS = 2 * (32 * 288 + 64)
SRD_WS = 28; SRD_X = 8; SRD_OUT = 12; SRD_DW = 48

def gen_k3(cfg=None):
    p = Prog()
    p(f"""
    s_cmp_ge_u32 s2, 250
    s_cbranch_scc1 Lk3_done
    s_load_dwordx2 s[36:37], s[0:1], 0          ; x
    s_load_dwordx2 s[38:39], s[0:1], 48         ; dw
    s_load_dwordx2 s[40:41], s[0:1], 72         ; out
    s_load_dwordx2 s[42:43], s[0:1], 88         ; ws
    v_lshrrev_b32 v2, 6, v0
    v_and_b32 v1, 63, v0                        ; lane
    s_cmp_ge_u32 s2, 125
    v_readfirstlane_b32 s16, v2                 ; wave
    s_cselect_b32 s17, 1, 0                     ; batch
    s_mul_i32 s18, s17, 125
    s_sub_u32 s18, s2, s18
    s_lshr_b32 s19, s18, 1                      ; qt
    s_and_b32 s20, s18, 1                       ; qs
    s_mul_i32 s21, s17, 126
    s_lshl_b32 s22, s19, 1
    s_add_u32 s21, s21, s22
    s_waitcnt lgkmcnt(0)
    """)
    srd(p, SRD_WS, 42, 0x10000000)
    srd(p, SRD_X, 36, 2304000)
    srd(p, SRD_OUT, 40, 2304000)
    srd(p, SRD_DW, 38, 4320)
    p(f"""
    s_mul_i32 s23, s21, {4 * 40 * 1024}
    s_mul_i32 s24, s20, {20 * 1024}
    s_add_u32 s23, s23, s24
    s_add_u32 s23, s23, {WS_PART}
    v_lshlrev_b32 v3, 4, v1                     ; lane*16
    """)
    for k in range(8):
        p(f"s_add_u32 s24, s23, {k * 40 * 1024 + 18 * 1024}")
        p(f"buffer_load_dword v{8 + k}, v3, s[{SRD_WS}:{SRD_WS+3}], s24 offen")
    p(f"s_lshl_b32 s25, s16, 10\ns_add_u32 s23, s23, s25")
    QB = 16
    for j in range(5):
        for k in range(8):
            p(f"s_add_u32 s24, s23, {k * 40 * 1024 + j * 4096}")
            r = QB + (j * 8 + k) * 4
            p(f"buffer_load_dwordx4 v[{r}:{r+3}], v3, s[{SRD_WS}:{SRD_WS+3}], s24 offen")
    p("s_waitcnt vmcnt(40)")
    for k in range(1, 8): p(f"v_add_f32 v8, v8, v{8 + k}")
    p("v_rcp_f32 v8, v8")
    p(f"""
    v_and_b32 v4, 31, v1                        ; q
    v_lshrrev_b32 v5, 5, v1                     ; h
    v_mul_u32_u24 v4, 288, v4
    v_lshl_add_u32 v4, v5, 3, v4                ; q*288 + 8h
    s_lshl_b32 s25, s16, 4
    v_add_u32 v4, s25, v4
    v_mov_b32 v9, v8
    """)
    for j in range(5):
        p(f"s_waitcnt vmcnt({(4 - j) * 8})")
        r0 = QB + j * 32
        for k in range(1, 8):
            r = r0 + 4 * k
            p(f"v_pk_add_f32 v[{r0}:{r0+1}], v[{r0}:{r0+1}], v[{r}:{r+1}]")
            p(f"v_pk_add_f32 v[{r0+2}:{r0+3}], v[{r0+2}:{r0+3}], v[{r+2}:{r+3}]")
        p(f"v_pk_mul_f32 v[{r0}:{r0+1}], v[{r0}:{r0+1}], v[8:9]")
        p(f"v_pk_mul_f32 v[{r0+2}:{r0+3}], v[{r0+2}:{r0+3}], v[8:9]")
        p(f"v_cvt_pk_bf16_f32 v{r0}, v{r0}, v{r0+1}")
        p(f"v_cvt_pk_bf16_f32 v{r0+1}, v{r0+2}, v{r0+3}")
        if j == 4:
            p("s_cmp_ge_u32 s16, 2\ns_cbranch_scc1 Lk3_skipq")
        p(f"ds_write_b64 v4, v[{r0}:{r0+1}] offset:{LDS_O + j * 64}")
    p.label('Lk3_skipq')
    p(f"""
    v_mul_u32_u24 v4, 911, v0
    v_lshrrev_b32 v4, 16, v4
    v_mul_u32_u24 v5, 72, v4
    v_sub_u32 v5, v0, v5                        ; cp = tid % 72
    v_cmp_gt_u32 vcc, 216, v0
    s_and_saveexec_b64 s[44:45], vcc
    s_cbranch_execz Lk3_noconv
    v_mul_u32_u24 v6, 11, v4                    ; r0
    v_lshlrev_b32 v7, 2, v5                     ; cp*4
    v_mul_u32_u24 v8, 288, v6
    v_add_u32 v8, v8, v7                        ; r0*288 + cp*4
    s_mul_i32 s23, s17, 4016
    s_lshl_b32 s24, s18, 5
    s_add_u32 s23, s23, s24
    s_add_u32 s23, s23, 1
    s_mul_i32 s23, s23, 288
    s_add_u32 s23, s23, {WS_G}
    v_add_u32 v9, 4032, v8
    """)
    GR = 16
    for k in range(25):
        if k < 14: p(f"buffer_load_dword v{GR + k}, v8, s[{SRD_WS}:{SRD_WS+3}], s23 offen offset:{k * 288}")
        else: p(f"buffer_load_dword v{GR + k}, v9, s[{SRD_WS}:{SRD_WS+3}], s23 offen offset:{(k - 14) * 288}")
    DR = 42
    for i in range(15):
        p(f"buffer_load_dword v{DR + i}, v7, s[{SRD_DW}:{SRD_DW+3}], 0 offen offset:{i * 288}")
    UR = 58
    p(f"s_lshl_b32 s24, s2, 5\ns_mul_i32 s24, s24, 288\ns_add_u32 s24, s24, {WS_U}")
    for r in range(11):
        p(f"buffer_load_dword v{UR + r}, v8, s[{SRD_WS}:{SRD_WS+3}], s24 offen offset:{r * 288}")
    GF = 70
    DF = 120
    AC = 150
    p("s_waitcnt vmcnt(11)")
    for k in range(25):
        p(f"v_lshlrev_b32 v{GF + 2*k}, 16, v{GR + k}\nv_and_b32 v{GF + 2*k + 1}, 0xffff0000, v{GR + k}")
    for i in range(15):
        p(f"v_lshlrev_b32 v{DF + 2*i}, 16, v{DR + i}\nv_and_b32 v{DF + 2*i + 1}, 0xffff0000, v{DR + i}")
    for r in range(11):
        p(f"v_pk_mul_f32 v[{AC + 2*r}:{AC + 2*r + 1}], v[{GF + 2*r}:{GF + 2*r + 1}], v[{DF}:{DF+1}]")
    for i in range(1, 15):
        for r in range(11):
            p(f"v_pk_fma_f32 v[{AC + 2*r}:{AC + 2*r + 1}], v[{GF + 2*(r+i)}:{GF + 2*(r+i) + 1}], v[{DF + 2*i}:{DF + 2*i + 1}], v[{AC + 2*r}:{AC + 2*r + 1}]")
    p("s_waitcnt vmcnt(0)")
    p(f"""
    v_lshlrev_b32 v10, 1, v5                    ; d
    v_lshrrev_b32 v11, 5, v10                   ; n
    v_bfe_u32 v12, v10, 4, 1                    ; b
    v_bfe_u32 v13, v10, 2, 2                    ; g
    v_and_b32 v14, 3, v10                       ; jj
    v_lshlrev_b32 v11, 5, v11
    v_lshl_add_u32 v11, v13, 3, v11
    v_lshl_add_u32 v11, v12, 2, v11
    v_add_u32 v11, v11, v14
    v_cmp_gt_u32 vcc, 128, v10
    s_nop 1
    v_cndmask_b32 v11, v10, v11, vcc            ; p~
    v_lshlrev_b32 v11, 1, v11
    v_mul_u32_u24 v12, 288, v6
    v_add_u32 v11, v11, v12                     ; r0*288 + 2*p~
    """)
    for r in range(11):
        p(f"v_lshlrev_b32 v12, 16, v{UR + r}\nv_and_b32 v13, 0xffff0000, v{UR + r}")
        p(f"v_pk_mul_f32 v[12:13], v[12:13], v[{AC + 2*r}:{AC + 2*r + 1}]")
        p(f"v_cvt_pk_bf16_f32 v12, v12, v13")
        if r == 10:
            p("v_cmp_gt_u32 vcc, 2, v4\ns_and_b64 exec, exec, vcc")
        p(f"ds_write_b32 v11, v12 offset:{LDS_Y + r * 288}")
    p.label('Lk3_noconv')
    p("s_mov_b64 exec, -1")
    p("s_waitcnt lgkmcnt(0)\ns_barrier")
    BO = 16; BY = 36
    WF = 60
    ACC = 240
    p(f"""
    s_and_b32 s23, s16, 1                       ; rt
    s_lshr_b32 s24, s16, 1                      ; ot0
    v_and_b32 v4, 15, v1                        ; m
    v_lshrrev_b32 v5, 4, v1                     ; g
    s_lshl_b32 s25, s23, 4
    v_add_u32 v6, s25, v4
    v_mul_u32_u24 v6, 288, v6
    v_lshl_add_u32 v7, v5, 4, v6                ; row*288 + 16g
    v_lshl_add_u32 v8, v5, 3, v6                ; row*288 + 8g
    v_lshlrev_b32 v9, 4, v1                     ; lane*16
    v_lshlrev_b32 v10, 3, v1                    ; lane*8
    s_mul_i32 s26, s24, 4608
    """)
    for t in range(5):
        for part, base in ((0, WS_WFO), (1, WS_WFD)):
            r = WF + t * 36 + part * 18
            p(f"s_add_u32 s27, s26, {base + t * 2 * 4608}")
            for n in range(4):
                p(f"buffer_load_dwordx4 v[{r + 4*n}:{r + 4*n + 3}], v9, s[{SRD_WS}:{SRD_WS+3}], s27 offen offset:{n * 1024}")
            p(f"s_add_u32 s27, s27, 4096")
            p(f"buffer_load_dwordx2 v[{r + 16}:{r + 17}], v10, s[{SRD_WS}:{SRD_WS+3}], s27 offen")
    for base, B in ((LDS_O, BO), (LDS_Y, BY)):
        for n in range(4): p(f"ds_read_b128 v[{B + 4*n}:{B + 4*n + 3}], v7 offset:{base + n * 64}")
        p(f"ds_read_b64 v[{B + 16}:{B + 17}], v8 offset:{base + 256}")
    p(f"""
    s_lshl_b32 s27, s2, 5
    s_mul_i32 s27, s27, 288
    s_lshl_b32 s25, s24, 5
    s_add_u32 s27, s27, s25
    s_waitcnt lgkmcnt(0)
    """)
    for t in range(5):
        if t == 4: p("s_cmp_eq_u32 s24, 1\ns_cbranch_scc1 Lk3_end")
        p(f"buffer_load_dwordx2 v[12:13], v8, s[{SRD_X}:{SRD_X+3}], s27 offen offset:{t * 64}")
        p(f"s_waitcnt vmcnt({min(63, (4 - t) * 10 + 1 + 0)})" if False else "s_waitcnt vmcnt(0)")
        acc = f"v[{ACC}:{ACC+3}]"
        first = True
        for part, B in ((0, BO), (1, BY)):
            r = WF + t * 36 + part * 18
            for n in range(4):
                p(f"v_mfma_f32_16x16x32_bf16 {acc}, v[{r + 4*n}:{r + 4*n + 3}], v[{B + 4*n}:{B + 4*n + 3}], {'0' if first else acc}")
                first = False
            p(f"v_mfma_f32_16x16x16_bf16 {acc}, v[{r + 16}:{r + 17}], v[{B + 16}:{B + 17}], {acc}")
        p(f"""
        v_lshlrev_b32 v14, 16, v12
        v_and_b32 v15, 0xffff0000, v12
        v_lshlrev_b32 v244, 16, v13
        v_and_b32 v245, 0xffff0000, v13
        v_pk_add_f32 v[{ACC}:{ACC+1}], v[{ACC}:{ACC+1}], v[14:15]
        v_pk_add_f32 v[{ACC+2}:{ACC+3}], v[{ACC+2}:{ACC+3}], v[244:245]
        v_cvt_pk_bf16_f32 v246, v{ACC}, v{ACC+1}
        v_cvt_pk_bf16_f32 v247, v{ACC+2}, v{ACC+3}
        buffer_store_dwordx2 v[246:247], v8, s[{SRD_OUT}:{SRD_OUT+3}], s27 offen offset:{t * 64}
        """)
    p.label('Lk3_end')
    p("s_waitcnt vmcnt(0)")
    p.label('Lk3_done')
    p("s_endpgm")
    return p

if __name__ == '__main__':
    p = gen_k3()
    n = p.fix_hazards()
    print('nops', n, p.max_regs(), 'instrs', len(p.ins))
```

```python
TILE = 9216
WS_XA   = 0x000000
WS_QF   = 0x280000
WS_NM   = 0x500000
WS_U    = 0x520000
WS_G    = 0x780000
G_ROWS  = 4016
WS_WFO  = 0x9E0000
WS_WFD  = 0x9F0000
WS_STAMP = 0xA00000
WS_PART = 0x1000000
LOG2E = 1.4426950408889634
def fhex(x):
    import struct
    return '0x%08x' % struct.unpack('<I', struct.pack('<f', x))[0]
KA = dict(x=0, w_q=8, w_k=16, w_v=24, w_ao=32, w_up=40, dw=48, w_dn=56, w_merge=64, out=72, dbg=80, ws=88)
```

```python
import sys
from asmlib import *
import k1, k2, k3
HEADER = open('standalone__conformer_family_branchformer__speech.s.ref').read().split('; Override launch geometry')[0]
def build(out, cfg=None, extra_empty=0):
    cfg = cfg or {}
    ks = [('prep_kernel', k1.gen_k1(cfg), 256, k1.K1_LDS), ('attn_kernel', k2.gen_k2(cfg), 252, k2.K2_LDS), ('fin_kernel', k3.gen_k3(cfg), 250, k3.K3_LDS)]
    txt = HEADER
    for name, p, grid, lds in ks:
        txt += f"; @launch kernel={name} grid=({grid},1,1) block=(256,1,1) lds={lds}\n"
    for i in range(extra_empty):
        txt += f"; @launch kernel=empty_kernel grid=(256,1,1) block=(256,1,1) lds=0\n"
    txt += '.amdgcn_target "amdgcn-amd-amdhsa--gfx950"\n.text\n'
    kds = ''
    for name, p, grid, lds in ks:
        p.fix_hazards()
        nv, na, ns = p.max_regs()
        txt += f".globl {name}\n.p2align 8\n.type {name},@function\n{name}:\n" + p.text()
        if na: nv = 256 if nv > 0 else nv
        kds += kd(name, nv, na, max(ns, 16))
    if extra_empty:
        txt += ".globl empty_kernel\n.p2align 8\n.type empty_kernel,@function\nempty_kernel:\n    s_endpgm\n"
        kds += kd('empty_kernel', 4, 0, 16)
    txt += '.section .rodata,"a"\n' + kds
    open(out, 'w').write(txt)
if __name__ == '__main__':
    build('v1.s')
    build('v1_e1.s', extra_empty=1)
    build('v1_e4.s', extra_empty=4)
```
